```python
import torch

def _softmax(x, axis=-1):
    return torch.softmax(x, dim=axis)
def _gelu(x):
    return torch.nn.functional.gelu(x, approximate="tanh")
def _silu(x):
    return torch.nn.functional.silu(x)
def _sigmoid(x):
    return torch.sigmoid(x)
def _layernorm(x, axis=-1, eps=1e-5):
    m = x.mean(dim=axis, keepdim=True)
    v = x.var(dim=axis, keepdim=True, unbiased=False)
    return (x - m) / torch.sqrt(v + eps)
def _scatter_add(tgt, idx, src, axis=0):
    return tgt.clone().index_add_(axis, idx, src)
def _segment_sum(src, seg, n):
    out = torch.zeros((n,) + src.shape[1:], dtype=src.dtype)
    return out.index_add_(0, seg, src)
def _pad(x, pw):
    flat = tuple(v for pair in reversed(pw) for v in pair)
    return torch.nn.functional.pad(x, flat)

kernel_name = 'concat_heads__sliding_local_dilated__ssm_conv_h3__prompt'

def setup_inputs():

    _w = (lambda a: (lambda t: t.to(torch.bfloat16) if t.is_floating_point() else t)(torch.as_tensor(a)))
    def _A_setup():
        B, S, D = 1, 2048, 576
        return {
            "x": _w((lambda *s: torch.randn(*s, dtype=torch.bfloat16) * 0.2)(B, S, D)),
            "wqkv": _w((lambda *s: torch.randn(*s, dtype=torch.bfloat16) * 0.2)(D, 3 * D)),
            "wo": _w((lambda *s: torch.randn(*s, dtype=torch.bfloat16) * 0.05)(D, D)),
        }
    _A_in = _A_setup()

    def _B_setup():
        B, S, D = 1, 2048, 576
        ks = 4
        return {
            "q": _w((lambda *s: torch.randn(*s, dtype=torch.bfloat16) * 0.05)(B, S, D)),
            "k": _w((lambda *s: torch.randn(*s, dtype=torch.bfloat16) * 0.8)(B, S, D)),
            "v": _w((lambda *s: torch.randn(*s, dtype=torch.bfloat16) * 0.8)(B, S, D)),
            "shift_k": _w((lambda *s: torch.randn(*s, dtype=torch.bfloat16) * 0.8)(D, ks) * 0.5),
            "ssm_k": _w((lambda *s: torch.randn(*s, dtype=torch.bfloat16) * 3.2)(D, S) * (1.0 / S ** 0.5)),
            "ssm_D": _w((lambda *s: torch.randn(*s, dtype=torch.bfloat16) * 0.8)(D)),
        }
    _B_in = _B_setup()

    return {
        "A_x": _A_in["x"],
        "A_wqkv": _A_in["wqkv"],
        "A_wo": _A_in["wo"],
        "B_q": _B_in["q"],
        "B_k": _B_in["k"],
        "B_v": _B_in["v"],
        "B_shift_k": _B_in["shift_k"],
        "B_ssm_k": _B_in["ssm_k"],
        "B_ssm_D": _B_in["ssm_D"],
    }

def reference(A_x, A_wqkv, A_wo, B_q, B_k, B_v, B_shift_k, B_ssm_k, B_ssm_D):
    def _A_ref(x, wqkv, wo):
        B, S, D = x.shape
        H = 32; Dh = D // H
        W, dil = 8, 2
        qkv = (lambda x, *d: x.permute(*d))((x @ wqkv).reshape(B, S, 3, H, Dh), 2, 0, 3, 1, 4)
        q, k, v = qkv[0], qkv[1], qkv[2]
        scale = Dh ** -0.5
        pos = torch.arange(S)
        off = torch.arange(W) * dil
        idx = pos[:, None] - off[None, :]
        mask = idx >= 0
        idx_c = torch.where(mask, idx, 0).reshape(-1)
        kg = k[:, :, idx_c, :].reshape(B, H, S, W, Dh)
        vg = v[:, :, idx_c, :].reshape(B, H, S, W, Dh)
        logits = torch.einsum("bhsd,bhswd->bhsw", q, kg) * scale
        logits = torch.where(mask[None, None, :, :], logits, -1e9)
        attn = _softmax(logits, axis=-1)
        o = torch.einsum("bhsw,bhswd->bhsd", attn, vg)
        return (lambda x, *d: x.permute(*d))(o, 0, 2, 1, 3).reshape(B, S, D) @ wo

    def _B_ref(q, k, v, shift_k, ssm_k, ssm_D):
        B, S, D = q.shape
        ks = shift_k.shape[-1]
        k_pad = _pad(k, ((0, 0), (ks - 1, 0), (0, 0)))
        k_shift = torch.zeros_like(k)
        for t in range(ks):
            k_shift = k_shift + k_pad[:, t:t + S, :] * shift_k[:, ks - 1 - t][None, None, :]
        kv = k_shift * v
        L = 2 * S
        kv_pad = _pad(kv, ((0, 0), (0, S), (0, 0)))
        kf_pad = _pad(ssm_k, ((0, 0), (0, S)))
        kv_f = (lambda x, axes=(-2,-1): torch.fft.rfft2(x.float(), dim=axes))(kv_pad[:, None, :, :], axes=(1, 2))
        kf_f = (lambda x, axes=(-2,-1): torch.fft.rfft2(x.float(), dim=axes))(kf_pad[:, None, :], axes=(1, 2))
        kf_f = (lambda x, *d: x.permute(*d))(kf_f, 1, 2, 0)
        y_f = kv_f * kf_f[None, :, :, :]
        y = (lambda x, s, axes=(-2,-1): torch.fft.irfft2(x, s=s, dim=axes).to(torch.bfloat16))(y_f, (1, L), axes=(1, 2))[:, 0, :S, :]
        y = y + kv * ssm_D[None, None, :]
        return q * y

    a = _A_ref(A_x, A_wqkv, A_wo)
    b = _B_ref(B_q, B_k, B_v, B_shift_k, B_ssm_k, B_ssm_D)
    return torch.concatenate([a, b], axis=-1)
```

```python
class Asm:
    def __init__(self):
        self.lines = []
        self._uid = 0
    def __call__(self, s):
        for l in s.strip("\n").split("\n"):
            self.lines.append("    " + l.strip())
    def label(self, l):
        self.lines.append(l + ":")
    def comment(self, c):
        self.lines.append("    ; " + c)
    def raw(self, s):
        self.lines.append(s)
    def uid(self, p="L"):
        self._uid += 1
        return f"{p}_{self._uid}"
    def text(self):
        return "\n".join(self.lines) + "\n"

def v(n): return f"v{n}"
def vr(n, c):
    assert c >= 1
    if c == 1: return f"v{n}"
    assert n % 2 == 0, f"unaligned vgpr tuple v{n} x{c}"
    return f"v[{n}:{n+c-1}]"
def s(n): return f"s{n}"
def sr(n, c):
    if c == 1: return f"s{n}"
    if c == 2: assert n % 2 == 0
    if c >= 4: assert n % 4 == 0
    return f"s[{n}:{n+c-1}]"

class RegAlloc:
    def __init__(self, start, limit):
        self.next = start; self.limit = limit; self.hi = start
    def alloc(self, n=1, align=1):
        if n >= 2: align = max(align, 2)
        a = (self.next + align - 1) // align * align
        self.next = a + n
        assert self.next <= self.limit, f"out of registers: {self.next} > {self.limit}"
        self.hi = max(self.hi, self.next)
        return a
    def mark(self): return self.next
    def reset(self, m): self.next = m
```

```python
import sys
from asmlib import *

KN = "concat_heads__sliding_local_dilated__ssm_conv_h3__prompt"
S = 2048; D = 576
OWS = 0
UWS = 0x400000
P_X, P_WQKV, P_WO, P_Q, P_K, P_V, P_SHIFT, P_SSMK, P_D, P_OUT, P_DBG, P_WS = 16, 18, 20, 22, 24, 26, 28, 30, 32, 34, 36, 38

def load_kernargs(a):
    a("s_load_dwordx16 s[16:31], s[0:1], 0")
    a("s_load_dwordx8 s[32:39], s[0:1], 64")

def make_srd(a, dst, ptr, nbytes, add=None):
    if add is None:
        a(f"s_mov_b32 s{dst}, s{ptr}")
        a(f"s_and_b32 s{dst+1}, s{ptr+1}, 0xffff")
    else:
        a(f"s_add_u32 s{dst}, s{ptr}, {add}")
        a(f"s_addc_u32 s{dst+1}, s{ptr+1}, 0")
        a(f"s_and_b32 s{dst+1}, s{dst+1}, 0xffff")
    a(f"s_mov_b32 s{dst+2}, {nbytes}")
    a(f"s_mov_b32 s{dst+3}, 0x00020000")

def role_b0(a, s_idx):
    SK, SV, SS, SU = 40, 44, 48, 52
    a(f"s_and_b32 s4, s{s_idx}, 31")
    a(f"s_lshr_b32 s5, s{s_idx}, 5")
    a("s_mul_i32 s6, s4, 73728")
    a("s_lshl_b32 s7, s5, 7")
    a("s_add_u32 s6, s6, s7")
    a("v_and_b32 v1, 7, v0")
    a("v_lshrrev_b32 v2, 3, v0")
    a("v_mul_u32_u24 v3, 9216, v1")
    a("v_add_u32 v3, s6, v3")
    a("v_lshl_add_u32 v3, v2, 2, v3")
    a("v_subrev_u32 v4, 3456, v3")
    a("v_subrev_u32 v5, 2304, v3")
    a("v_subrev_u32 v6, 1152, v3")
    a("v_add_u32 v7, 4608, v3")
    a("s_lshl_b32 s7, s5, 9")
    a("v_lshlrev_b32 v8, 4, v2")
    a("v_add_u32 v8, s7, v8")
    a("s_lshl_b32 s8, s5, 18")
    a("s_lshl_b32 s9, s4, 7")
    a("s_sub_u32 s8, s8, s9")
    a("s_add_u32 s8, s8, 4080")
    a("v_lshlrev_b32 v9, 13, v2")
    a("v_lshlrev_b32 v10, 4, v1")
    a("v_sub_u32 v9, v9, v10")
    a("v_add_u32 v9, s8, v9")
    a("s_waitcnt lgkmcnt(0)")
    make_srd(a, SK, P_K, S * D * 2)
    make_srd(a, SV, P_V, S * D * 2)
    make_srd(a, SS, P_SHIFT, D * 4 * 2)
    make_srd(a, SU, P_WS, D * 4096, add=UWS)
    KR = 12
    VR = 24
    SKR = 32
    a(f"buffer_load_dwordx4 v[{SKR}:{SKR+3}], v8, s[{SS}:{SS+3}], 0 offen")
    a(f"buffer_load_dword v{KR+0}, v4, s[{SK}:{SK+3}], 0 offen")
    a(f"buffer_load_dword v{KR+1}, v5, s[{SK}:{SK+3}], 0 offen")
    a(f"buffer_load_dword v{KR+2}, v6, s[{SK}:{SK+3}], 0 offen")
    for i in range(8):
        base = "v3" if i < 4 else "v7"
        a(f"buffer_load_dword v{KR+3+i}, {base}, s[{SK}:{SK+3}], 0 offen offset:{(i%4)*1152}")
    for i in range(8):
        base = "v3" if i < 4 else "v7"
        a(f"buffer_load_dword v{VR+i}, {base}, s[{SV}:{SV+3}], 0 offen offset:{(i%4)*1152}")
    a("s_waitcnt vmcnt(0)")
    KF = 36
    SF = 48
    ACC = 52
    VF = 60
    PK = 64
    for e in range(2):
        for i in range(11):
            if e == 0: a(f"v_lshlrev_b32 v{KF+i}, 16, v{KR+i}")
            else:      a(f"v_and_b32 v{KF+i}, 0xffff0000, v{KR+i}")
        a(f"v_lshlrev_b32 v{SF+0}, 16, v{SKR+2*e}")
        a(f"v_and_b32 v{SF+1}, 0xffff0000, v{SKR+2*e}")
        a(f"v_lshlrev_b32 v{SF+2}, 16, v{SKR+2*e+1}")
        a(f"v_and_b32 v{SF+3}, 0xffff0000, v{SKR+2*e+1}")
        for t in range(8):
            a(f"v_mul_f32 v{ACC+t}, v{KF+t}, v{SF+3}")
        for t in range(8):
            a(f"v_fmac_f32 v{ACC+t}, v{KF+t+1}, v{SF+2}")
        for t in range(8):
            a(f"v_fmac_f32 v{ACC+t}, v{KF+t+2}, v{SF+1}")
        for t in range(8):
            a(f"v_fmac_f32 v{ACC+t}, v{KF+t+3}, v{SF+0}")
        for t in range(8):
            if e == 0: a(f"v_lshlrev_b32 v{VF}, 16, v{VR+t}")
            else:      a(f"v_and_b32 v{VF}, 0xffff0000, v{VR+t}")
            a(f"v_mul_f32 v{ACC+t}, v{ACC+t}, v{VF}")
        for d in range(4):
            a(f"v_cvt_pk_bf16_f32 v{PK+4*e+d}, v{ACC+7-2*d}, v{ACC+6-2*d}")
    a("v_add_u32 v10, 4096, v9")
    a(f"buffer_store_dwordx4 v[{PK}:{PK+3}], v9, s[{SU}:{SU+3}], 0 offen sc1")
    a(f"buffer_store_dwordx4 v[{PK+4}:{PK+7}], v10, s[{SU}:{SU+3}], 0 offen sc1")
    a("s_waitcnt vmcnt(0)")

B1_CS = 4160
B1_UE = 16640
B1_UO = 2304
B1_CHS = 16640 + 4608
B1_LDS = 2 * B1_CHS

def role_b1(a, s_idx):
    SH, SU, SQ, SO = 40, 44, 48, 52
    a("v_lshrrev_b32 v1, 6, v0")
    a("v_and_b32 v2, 63, v0")
    a("s_nop 0")
    a("v_readfirstlane_b32 s4, v1")
    a("s_nop 3")
    a("s_lshr_b32 s5, s4, 1")
    a("s_and_b32 s6, s4, 1")
    a(f"s_lshl_b32 s7, s{s_idx}, 1")
    a("s_add_u32 s8, s7, s5")
    a("s_lshl_b32 s9, s8, 12")
    a(f"s_mul_i32 s10, s5, {B1_CHS}")
    a("s_waitcnt lgkmcnt(0)")
    make_srd(a, SH, P_SSMK, 4096, add="s9")
    a(f"s_add_u32 s11, s9, {UWS}")
    make_srd(a, SU, P_WS, 4096, add="s11")
    make_srd(a, SQ, P_Q, S * D * 2)
    make_srd(a, SO, P_OUT, S * 2 * D * 2)
    a("v_and_b32 v3, 127, v0")
    a("v_lshlrev_b32 v4, 4, v3")
    a("v_subrev_u32 v5, 32, v4")
    a("v_subrev_u32 v6, 16, v4")
    HD = 16
    for i in range(3):
        base = HD + 8 * i
        if i == 0:
            a(f"buffer_load_dwordx4 v[{base}:{base+3}], v5, s[{SH}:{SH+3}], 0 offen")
            a(f"buffer_load_dwordx2 v[{base+4}:{base+5}], v6, s[{SH}:{SH+3}], 0 offen")
        else:
            a(f"buffer_load_dwordx4 v[{base}:{base+3}], v4, s[{SH}:{SH+3}], 0 offen offset:{2048*i-32}" if 2048*i-32 < 4096 else
              f"buffer_load_dwordx4 v[{base}:{base+3}], v7, s[{SH}:{SH+3}], 0 offen")
            a(f"buffer_load_dwordx2 v[{base+4}:{base+5}], v4, s[{SH}:{SH+3}], 0 offen offset:{2048*i-16}")
    UD = 40
    a("v_lshlrev_b32 v7, 5, v3")
    a(f"buffer_load_dwordx4 v[{UD}:{UD+3}], v7, s[{SU}:{SU+3}], 0 offen sc1")
    a(f"buffer_load_dwordx4 v[{UD+4}:{UD+7}], v7, s[{SU}:{SU+3}], 0 offen offset:16 sc1")
    QD = 48
    a("v_mul_u32_u24 v8, 1152, v0")
    a("s_lshl_b32 s12, s7, 1")
    a("v_add_u32 v8, s12, v8")
    for i in range(8):
        a(f"s_mov_b32 s13, {256*1152*i}")
        a(f"buffer_load_dword v{QD+i}, v8, s[{SQ}:{SQ+3}], s13 offen")
    a("s_load_dword s14, s[32:33], s12")
    a("v_add_u32 v9, s10, v4")
    T0 = 56
    a("s_waitcnt vmcnt(10)")
    for i in range(3):
        d = HD + 8 * i
        if i == 2:
            a("v_cmp_gt_u32 vcc, 2, v3")
            a("s_and_saveexec_b64 s[60:61], vcc")
        a(f"v_alignbit_b32 v{T0+0}, v{d+1}, v{d+0}, 16")
        a(f"v_alignbit_b32 v{T0+1}, v{d+2}, v{d+1}, 16")
        a(f"v_alignbit_b32 v{T0+2}, v{d+3}, v{d+2}, 16")
        a(f"v_alignbit_b32 v{T0+3}, v{d+4}, v{d+3}, 16")
        a(f"v_mov_b32 v{T0+4}, v{d+1}")
        a(f"v_mov_b32 v{T0+5}, v{d+2}")
        a(f"v_mov_b32 v{T0+6}, v{d+3}")
        a(f"v_mov_b32 v{T0+7}, v{d+4}")
        a(f"v_mov_b32 v{T0+8}, v{T0+1}")
        a(f"v_mov_b32 v{T0+9}, v{T0+2}")
        a(f"v_mov_b32 v{T0+10}, v{T0+3}")
        a(f"v_alignbit_b32 v{T0+11}, v{d+5}, v{d+4}, 16")
        a(f"ds_write_b128 v9, v[{T0}:{T0+3}] offset:{0*B1_CS+2048*i}")
        a(f"ds_write_b128 v9, v[{T0+4}:{T0+7}] offset:{1*B1_CS+2048*i}")
        a(f"ds_write_b128 v9, v[{T0+8}:{T0+11}] offset:{2*B1_CS+2048*i}")
        a(f"ds_write_b128 v9, v[{d+2}:{d+5}] offset:{3*B1_CS+2048*i}")
        if i == 2:
            a("s_mov_b64 exec, s[60:61]")
        else:
            a("s_nop 1")
    a("v_mov_b32 v56, 0")
    a("v_mov_b32 v57, 0")
    a("v_mov_b32 v58, 0")
    a("v_mov_b32 v59, 0")
    a("v_cmp_gt_u32 vcc, 15, v3")
    a("s_and_saveexec_b64 s[60:61], vcc")
    a(f"ds_write_b128 v9, v[56:59] offset:{B1_UE+2048}")
    a(f"ds_write_b128 v9, v[56:59] offset:{B1_UE+B1_UO+2048}")
    a("s_mov_b64 exec, s[60:61]")
    a("s_waitcnt vmcnt(8)")
    a(f"ds_write_b128 v9, v[{UD}:{UD+3}] offset:{B1_UE}")
    a(f"ds_write_b128 v9, v[{UD+4}:{UD+7}] offset:{B1_UE+B1_UO}")
    a("v_and_b32 v10, 3, v2")
    a(f"v_mul_u32_u24 v10, {B1_CS}, v10")
    a("v_lshrrev_b32 v11, 2, v2")
    a("v_lshl_add_u32 v10, v11, 3, v10")
    a("s_lshl_b32 s15, s6, 8")
    a("s_add_u32 s15, s15, s10")
    a("v_add_u32 v10, s15, v10")
    a("v_and_b32 v11, 15, v2")
    a("v_lshrrev_b32 v12, 4, v2")
    a("v_sub_u32 v12, v12, v11")
    a("v_add_u32 v12, 15, v12")
    a("v_lshlrev_b32 v12, 4, v12")
    a("s_lshl_b32 s15, s6, 7")
    a("s_add_u32 s15, s15, s10")
    a(f"s_add_u32 s15, s15, {B1_UE}")
    a("v_add_u32 v11, s15, v12")
    a("s_waitcnt lgkmcnt(0)")
    a("s_barrier")
    ACC = 64
    HB = [96, 160]
    def reads(st, buf):
        Rp, s_ = st >> 1, st & 1
        hb = HB[buf]; gb = hb + 32
        out = []
        for p in range(8):
            off = p * 512 + Rp * 128 + s_ * 16
            out.append(f"ds_read_b64 v[{hb+4*p}:{hb+4*p+1}], v10 offset:{off}")
            out.append(f"ds_read_b64 v[{hb+4*p+2}:{hb+4*p+3}], v10 offset:{off+8}")
        for m in range(8):
            off = 256 * (7 - m) + 64 * Rp + B1_UO * s_
            out.append(f"ds_read_b128 v[{gb+4*m}:{gb+4*m+3}], v11 offset:{off}")
        return out
    for r in reads(0, 0): a(r)
    for j in range(8):
        for i in range(4): a(f"v_mov_b32 v{ACC+4*j+i}, 0")
    a("s_waitcnt lgkmcnt(0)")
    for st in range(4):
        buf = st & 1
        hb = HB[buf]; gb = hb + 32
        nxt = reads(st + 1, buf ^ 1) if st < 3 else []
        mf = []
        for p in range(8):
            for j in range(p, 8):
                m = j - p
                mf.append(f"v_mfma_f32_16x16x32_bf16 v[{ACC+4*j}:{ACC+4*j+3}], v[{gb+4*m}:{gb+4*m+3}], v[{hb+4*p}:{hb+4*p+3}], v[{ACC+4*j}:{ACC+4*j+3}]")
        for i, m in enumerate(mf):
            a(m)
            if i < len(nxt): a(nxt[i])
        a("s_waitcnt lgkmcnt(0)")
    a("s_barrier")
    a("v_and_b32 v12, 15, v2")
    a("v_lshrrev_b32 v13, 4, v2")
    a("v_lshlrev_b32 v13, 8, v13")
    a("v_lshl_add_u32 v12, v12, 2, v13")
    a("s_lshl_b32 s15, s6, 13")
    a("s_add_u32 s15, s15, s10")
    a("v_add_u32 v12, s15, v12")
    a("s_nop 4")
    for j in range(8):
        for r in range(4):
            a(f"ds_write_b32 v12, v{ACC+4*j+r} offset:{1024*j+64*r}")
    a("s_waitcnt lgkmcnt(0)")
    a("s_barrier")
    a("v_lshlrev_b32 v12, 2, v0")
    a("v_sub_u32 v13, 2047, v0")
    a("v_lshrrev_b32 v14, 3, v13")
    a("v_and_b32 v15, 1, v14")
    a(f"v_mul_u32_u24 v15, {B1_UO}, v15")
    a("v_lshrrev_b32 v14, 1, v14")
    a("v_lshl_add_u32 v15, v14, 4, v15")
    a("v_and_b32 v13, 7, v13")
    a("v_lshl_add_u32 v15, v13, 1, v15")
    a(f"v_add_u32 v15, {B1_UE - 256*7}, v15")
    a("s_waitcnt lgkmcnt(0)")
    a("s_lshl_b32 s56, s14, 16")
    a("s_and_b32 s57, s14, 0xffff0000")
    a("v_mul_u32_u24 v14, 2304, v0")
    a("s_add_u32 s12, s12, 1152")
    a("v_add_u32 v14, s12, v14")
    a("s_waitcnt vmcnt(0)")
    Y = 96
    for i in range(8):
        b = Y + 8 * i
        a(f"ds_read_b32 v{b+0}, v12 offset:{1024*i}")
        a(f"ds_read_b32 v{b+1}, v12 offset:{1024*i+8192}")
        a(f"ds_read_b32 v{b+2}, v12 offset:{1024*i+B1_CHS}")
        a(f"ds_read_b32 v{b+3}, v12 offset:{1024*i+B1_CHS+8192}")
        a(f"ds_read_u16 v{b+4}, v15 offset:{256*(7-i)}")
        a(f"ds_read_u16 v{b+5}, v15 offset:{256*(7-i)+B1_CHS}")
        if i % 2 == 1: a("s_waitcnt lgkmcnt(0)")
    for i in range(8):
        b = Y + 8 * i
        a(f"v_add_f32 v{b+0}, v{b+0}, v{b+1}")
        a(f"v_add_f32 v{b+2}, v{b+2}, v{b+3}")
        a(f"v_lshlrev_b32 v{b+4}, 16, v{b+4}")
        a(f"v_lshlrev_b32 v{b+5}, 16, v{b+5}")
        a(f"v_fmac_f32 v{b+0}, s56, v{b+4}")
        a(f"v_fmac_f32 v{b+2}, s57, v{b+5}")
        a(f"v_lshlrev_b32 v{b+6}, 16, v{QD+i}")
        a(f"v_and_b32 v{b+7}, 0xffff0000, v{QD+i}")
        a(f"v_mul_f32 v{b+0}, v{b+0}, v{b+6}")
        a(f"v_mul_f32 v{b+2}, v{b+2}, v{b+7}")
        a(f"v_cvt_pk_bf16_f32 v{b+1}, v{b+0}, v{b+2}")
        a(f"s_mov_b32 s13, {256*2304*i}")
        a(f"buffer_store_dword v{b+1}, v14, s[{SO}:{SO+3}], s13 offen")
    a("s_waitcnt vmcnt(0)")

def kernel_desc(name, vgpr, sgpr=102):
    acc = (vgpr + 3) // 4 * 4
    return f""".p2align 6
.amdhsa_kernel {name}
  .amdhsa_next_free_vgpr {vgpr}
  .amdhsa_next_free_sgpr {sgpr}
  .amdhsa_accum_offset {acc}
  .amdhsa_group_segment_fixed_size 0
  .amdhsa_kernarg_size 96
  .amdhsa_user_sgpr_count 2
  .amdhsa_user_sgpr_kernarg_segment_ptr 1
  .amdhsa_system_sgpr_workgroup_id_x 1
  .amdhsa_float_denorm_mode_32 3
.end_amdhsa_kernel
"""
```

```python
from asmlib import *
from gen import *

A1_STAGE = 16384
A1_NST = 4
A1_LDS = A1_STAGE * A1_NST
QROW = 288

class VM:
    def __init__(self): self.ops = []
    def issue(self, tag): self.ops.append(tag)
    def wait_n(self, tag):
        idx = max(i for i, t in enumerate(self.ops) if t == tag)
        return len(self.ops) - 1 - idx

def role_a1(a, s_idx):
    SX, SW, SO = 40, 44, 48
    a(f"s_and_b32 s8, s{s_idx}, 7")
    a(f"s_lshr_b32 s9, s{s_idx}, 3")
    a("s_lshr_b32 s4, s8, 1")
    a("s_lshl_b32 s4, s4, 2")
    a("s_lshr_b32 s10, s9, 3")
    a("s_add_u32 s4, s4, s10")
    a("s_and_b32 s5, s8, 1")
    a("s_lshl_b32 s5, s5, 3")
    a("s_and_b32 s10, s9, 7")
    a("s_add_u32 s5, s5, s10")
    a("s_mul_i32 s10, s9, 57")
    a("s_lshr_b32 s10, s10, 9")
    a("s_mul_i32 s10, s10, 9")
    a("s_sub_u32 s7, s9, s10")
    a("v_lshrrev_b32 v1, 6, v0")
    a("v_and_b32 v2, 63, v0")
    a("v_and_b32 v3, 15, v0")
    a("v_readfirstlane_b32 s6, v1")
    a("v_bfe_u32 v4, v0, 4, 2")
    VXA, VXB, VXH = 5, 6, 7
    a("s_lshl_b32 s8, s4, 7")
    a("s_lshl_b32 s9, s6, 5")
    a("s_add_u32 s9, s9, s8")
    a("v_add_u32 v8, s9, v3")
    a(f"v_mul_u32_u24 v{VXA}, 1152, v8")
    a(f"v_lshl_add_u32 v{VXA}, v4, 4, v{VXA}")
    a(f"v_add_u32 v{VXB}, 18432, v{VXA}")
    a("s_sub_i32 s9, s8, 16")
    a("v_add_u32 v8, s9, v3")
    a("v_max_i32 v8, 0, v8")
    a(f"v_mul_u32_u24 v{VXH}, 1152, v8")
    a(f"v_lshl_add_u32 v{VXH}, v4, 4, v{VXH}")
    VD = 8
    a("s_mul_i32 s10, s5, 72")
    a("s_lshl_b32 s11, s6, 6")
    for i in range(4):
        a(f"v_add_u32 v12, s11, v2")
        if i: a(f"v_add_u32 v12, {256*i}, v12")
        a("v_mul_u32_u24 v13, 4370, v12")
        a("v_lshrrev_b32 v13, 16, v13")
        a("v_mul_u32_u24 v14, 15, v13")
        a("v_sub_u32 v14, v12, v14")
        a("v_mul_u32_u24 v15, 52, v14")
        a("v_lshrrev_b32 v15, 8, v15")
        a("v_mul_u32_u24 v16, 5, v15")
        a("v_sub_u32 v16, v14, v16")
        a("v_and_b32 v17, 0xfffffff8, v13")
        a("v_and_b32 v18, 1, v13")
        a("v_lshl_or_b32 v17, v18, 2, v17")
        a("v_bfe_u32 v18, v13, 1, 2")
        a("v_or_b32 v17, v17, v18")
        a("v_mul_u32_u24 v17, 3456, v17")
        a("v_lshl_add_u32 v17, v16, 4, v17")
        a("v_add_u32 v18, 1, v15")
        a("v_mul_u32_u24 v18, 1152, v18")
        a("v_cmp_eq_u32 vcc, 2, v15")
        a("s_nop 1")
        a("v_cndmask_b32 v18, v18, 0, vcc" if False else "v_cndmask_b32_e64 v18, v18, 0, vcc")
        a("v_add_u32 v17, v17, v18")
        a(f"v_add_u32 v{VD+i}, s10, v17")
    VT = 12
    a("v_bfe_u32 v20, v0, 2, 2")
    a("v_and_b32 v21, 3, v0")
    a("v_lshlrev_b32 v22, 3, v4")
    a("v_lshl_add_u32 v22, v20, 1, v22")
    a("v_mul_u32_u24 v22, 240, v22")
    a("s_mov_b32 s56, s6")
    a("s_mov_b32 s57, 4")
    for j in range(1, 4):
        a(f"s_add_u32 s{57+j}, s6, {j}")
        a(f"s_and_b32 s{57+j}, s{57+j}, 3")
    a("s_mov_b32 s61, 5")
    a("s_mov_b32 s62, 6")
    for i in range(7):
        a(f"s_lshl_b32 s8, s{56+i}, 2")
        a("v_add_u32 v23, s8, v21")
        a("v_min_u32 v23, 26, v23")
        a("v_mul_u32_u24 v24, 57, v23")
        a("v_lshrrev_b32 v24, 9, v24")
        a("v_add_u32 v24, v24, v23")
        a(f"v_lshl_add_u32 v{VT+i}, v24, 3, v22")
    a("s_waitcnt lgkmcnt(0)")
    make_srd(a, SX, P_X, S * D * 2)
    make_srd(a, SW, P_WQKV, D * 3 * D * 2)
    make_srd(a, SO, P_WS, S * D * 2, add=OWS)
    a("s_mul_i32 s12, s7, 221184")
    a("s_lshl_b32 s13, s7, 7")
    a("s_lshl_b32 s14, s6, 10")
    ACC = 24
    WF = [88, 116]
    XR = 144
    vm = VM()
    def dma(c):
        st = c % A1_NST
        for i in range(4):
            a(f"s_add_u32 m0, s14, {st*A1_STAGE + i*4096}")
            a("s_nop 0")
            a(f"buffer_load_dwordx4 v{VD+i}, s[{SW}:{SW+3}], s12 offen lds")
            vm.issue(("D", c))
        a("s_add_u32 s12, s12, 221184")
        a(f"s_cmp_eq_u32 s12, {9*221184}")
        a("s_cselect_b32 s12, 0, s12")
    def xload(c):
        xb = XR + 24 * (c % 4)
        for ks in range(2):
            for j, vx in enumerate((VXA, VXB, VXH)):
                a(f"buffer_load_dwordx4 v[{xb+12*ks+4*j}:{xb+12*ks+4*j+3}], v{vx}, s[{SX}:{SX+3}], s13 offen offset:{64*ks}")
                vm.issue(("X", c, ks))
        a("s_add_u32 s13, s13, 128")
        a(f"s_cmp_eq_u32 s13, {9*128}")
        a("s_cselect_b32 s13, 0, s13")
    def wreads(c, ks, buf):
        st = c % A1_NST
        out = []
        for i in range(7):
            for hh in range(2):
                out.append(f"ds_read_b64_tr_b16 v[{WF[buf]+4*i+2*hh}:{WF[buf]+4*i+2*hh+1}], v{VT+i} offset:{st*A1_STAGE+(32*ks+hh)*240}")
        return out
    def mfmas(c, ks, buf, first):
        xb = XR + 24 * (c % 4) + 12 * ks
        out = []
        for i in range(7):
            w = f"v[{WF[buf]+4*i}:{WF[buf]+4*i+3}]"
            for tile in range(2):
                d = ACC + 28 * tile + 4 * i
                cc = "0" if first else f"v[{d}:{d+3}]"
                out.append(f"v_mfma_f32_16x16x32_bf16 v[{d}:{d+3}], {w}, v[{xb+4*tile}:{xb+4*tile+3}], {cc}")
            if i < 2:
                d = ACC + 56 + 4 * i
                cc = "0" if first else f"v[{d}:{d+3}]"
                out.append(f"v_mfma_f32_16x16x32_bf16 v[{d}:{d+3}], {w}, v[{xb+8}:{xb+11}], {cc}")
        return out
    for c in range(3):
        dma(c); xload(c)
    a(f"s_waitcnt vmcnt({vm.wait_n(('D',0))})")
    a("s_barrier")
    for r in wreads(0, 0, 0): a(r)
    step = 0
    for c in range(9):
        for ks in range(2):
            buf = step & 1
            if ks == 0: nxt = wreads(c, 1, buf ^ 1)
            else:
                nxt = wreads(c + 1, 0, buf ^ 1) if c < 8 else []
            if ks == 1 and c < 8:
                a(f"s_waitcnt vmcnt({vm.wait_n(('D',c+1))})")
                a("s_barrier")
                if c + 3 < 9:
                    dma(c + 3); xload(c + 3)
            a(f"s_waitcnt vmcnt({vm.wait_n(('X',c,ks))}) lgkmcnt(0)")
            mf = mfmas(c, ks, buf, step == 0)
            for i, m in enumerate(mf):
                a(m)
                if i < len(nxt): a(nxt[i])
            step += 1
    a("s_barrier")
    VL, VH = 88, 96
    a("v_mul_u32_u24 v5, 288, v3")
    a("s_lshl_b32 s8, s6, 5")
    a("s_add_u32 s8, s8, 16")
    a("s_mul_i32 s8, s8, 288")
    for i in range(7):
        a(f"s_lshl_b32 s9, s{56+i}, 2")
        a("v_add_u32 v6, s9, v4")
        a("v_mul_u32_u24 v7, 57, v6")
        a("v_lshrrev_b32 v7, 9, v7")
        a("v_min_u32 v7, 2, v7")
        a("v_mul_u32_u24 v8, 9, v7")
        a("v_sub_u32 v8, v6, v8")
        a("v_add_u32 v9, 1, v7")
        a("v_mul_u32_u24 v9, 96, v9")
        a("v_cmp_eq_u32 vcc, 2, v7")
        a("s_nop 1")
        a("v_cndmask_b32_e64 v9, v9, 0, vcc")
        a("v_lshlrev_b32 v10, 3, v8")
        a("v_cmp_lt_u32 vcc, 4, v8")
        a("v_add_u32 v11, 8, v10")
        a("s_nop 0")
        a("v_cndmask_b32 v10, v10, v11, vcc")
        a("v_cmp_eq_u32 vcc, 9, v8")
        a("v_add_u32 v11, 4, v10")
        a("s_nop 0")
        a("v_cndmask_b32 v10, v10, v11, vcc")
        a("v_add3_u32 v%d, v5, v9, v10" % (VL + i))
        a("v_cmp_eq_u32 vcc, 4, v8")
        a(f"v_add_u32 v10, 4, v{VL+i}")
        a(f"v_add_u32 v11, 48, v{VL+i}")
        a(f"v_cndmask_b32 v{VH+i}, v10, v11, vcc")
    T = 104
    def wr(d, lo, hi, off):
        a(f"v_cvt_pk_bf16_f32 v{T}, v{d}, v{d+1}")
        a(f"v_cvt_pk_bf16_f32 v{T+1}, v{d+2}, v{d+3}")
        a(f"ds_write_b32 v{lo}, v{T} offset:{off}")
        a(f"ds_write_b32 v{hi}, v{T+1} offset:{off}")
    for i in range(2):
        wr(ACC + 56 + 4 * i, VL + i, VH + i, 0)
    for i in range(7):
        a(f"v_add_u32 v{VL+i}, s8, v{VL+i}")
        a(f"v_add_u32 v{VH+i}, s8, v{VH+i}")
    for i in range(7):
        for tile in range(2):
            wr(ACC + 28 * tile + 4 * i, VL + i, VH + i, 4608 * tile)
    a("s_waitcnt lgkmcnt(0)")
    a("s_barrier")
    a("v_lshrrev_b32 v1, 1, v0")
    a("v_and_b32 v2, 1, v0")
    a("v_add_u32 v3, 2, v1")
    a("v_mul_u32_u24 v3, 288, v3")
    a("v_mul_u32_u24 v4, 48, v2")
    a("v_add_u32 v3, v3, v4")
    Q = 8
    KB = 20
    for part, (o, n) in enumerate(((0, 4), (16, 4), (32, 1))):
        pass
    def rd_row(dst, off):
        a(f"ds_read_b128 v[{dst}:{dst+3}], v3 offset:{off}")
        a(f"ds_read_b128 v[{dst+4}:{dst+7}], v3 offset:{off+16}")
        a(f"ds_read_b32 v{dst+8}, v3 offset:{off+32}")
    rd_row(Q, 14 * 288)
    for w in range(8):
        rd_row(KB + 10 * w, (14 - 2 * w) * 288 + 96)
        if w % 4 == 3: a("s_waitcnt lgkmcnt(0)")
    L = 100
    for w in range(8):
        a(f"v_dot2_f32_bf16 v{L+w}, v{Q}, v{KB+10*w}, 0")
        for i in range(1, 9):
            a(f"v_dot2_f32_bf16 v{L+w}, v{Q+i}, v{KB+10*w+i}, v{L+w}")
    for w in range(8):
        rd_row(KB + 10 * w, (14 - 2 * w) * 288 + 192)
    lm = a.uid("Lnomask")
    a("s_cmp_lg_u32 s4, 0")
    a(f"s_cbranch_scc1 {lm}")
    a("v_mov_b32 v110, 0xf149f2ca")
    for w in range(1, 8):
        a(f"v_cmp_gt_u32 vcc, {2*w}, v1")
        a("s_nop 1")
        a(f"v_cndmask_b32 v{L+w}, v{L+w}, v110, vcc")
    a.label(lm)
    a(f"v_max3_f32 v110, v{L}, v{L+1}, v{L+2}")
    a(f"v_max3_f32 v110, v110, v{L+3}, v{L+4}")
    a(f"v_max3_f32 v110, v110, v{L+5}, v{L+6}")
    a(f"v_max_f32 v110, v110, v{L+7}")
    cs = 18 ** -0.5 * 1.4426950408889634
    import struct
    csh = struct.unpack("<I", struct.pack("<f", cs))[0]
    a(f"s_mov_b32 s8, {csh:#x}")
    a("v_mul_f32 v111, s8, v110")
    for w in range(8):
        a(f"v_fma_f32 v{L+w}, v{L+w}, s8, -v111")
    for w in range(8):
        a(f"v_exp_f32 v{L+w}, v{L+w}")
    a("s_nop 0")
    a(f"v_add_f32 v110, v{L}, v{L+1}")
    for w in range(2, 8):
        a(f"v_add_f32 v110, v110, v{L+w}")
    a("v_rcp_f32 v110, v110")
    a("s_nop 0")
    for w in range(8):
        a(f"v_mul_f32 v{L+w}, v{L+w}, v110")
    PP = 112
    for j in range(4):
        a(f"v_cvt_pk_bf16_f32 v{PP+j}, v{L+2*j}, v{L+2*j+1}")
    a("s_mov_b32 s8, 0x05040100")
    a("s_mov_b32 s9, 0x07060302")
    O = 116
    TP = 134
    a("s_waitcnt lgkmcnt(0)")
    for j in range(4):
        A_ = KB + 10 * (2 * j); B_ = KB + 10 * (2 * j + 1)
        for i in range(9):
            a(f"v_perm_b32 v{TP}, v{B_+i}, v{A_+i}, s8")
            a(f"v_perm_b32 v{TP+1}, v{B_+i}, v{A_+i}, s9")
            c0 = "0" if j == 0 else f"v{O+2*i}"
            c1 = "0" if j == 0 else f"v{O+2*i+1}"
            a(f"v_dot2_f32_bf16 v{O+2*i}, v{TP}, v{PP+j}, {c0}")
            a(f"v_dot2_f32_bf16 v{O+2*i+1}, v{TP+1}, v{PP+j}, {c1}")
    OP = 136
    for i in range(9):
        a(f"v_cvt_pk_bf16_f32 v{OP+i}, v{O+2*i}, v{O+2*i+1}")
    a("s_lshr_b32 s8, s5, 1")
    a("s_and_b32 s9, s5, 1")
    a("s_lshr_b32 s10, s8, 2")
    a("s_mul_i32 s10, s10, 9")
    a("s_and_b32 s11, s8, 3")
    a("s_lshl_b32 s11, s11, 8")
    a("s_mul_i32 s12, s4, 147456")
    a("s_add_u32 s12, s12, s11")
    a("s_lshl_b32 s13, s10, 10")
    a("s_add_u32 s12, s12, s13")
    a("v_lshrrev_b32 v4, 4, v1")
    a("v_mul_u32_u24 v4, 18432, v4")
    a("v_and_b32 v5, 15, v1")
    a("v_lshl_add_u32 v4, v5, 4, v4")
    a("v_add_u32 v4, s12, v4")
    a("s_lshl_b32 s13, s9, 12")
    a("v_lshlrev_b32 v5, 11, v2")
    a("v_add3_u32 v5, v4, v5, s13")
    a("s_lshl_b32 s13, s9, 3")
    a("s_add_u32 s13, s13, 8192")
    a("v_lshlrev_b32 v6, 2, v2")
    a("v_add3_u32 v6, v4, v6, s13")
    a(f"buffer_store_dwordx4 v[{OP}:{OP+3}], v5, s[{SO}:{SO+3}], 0 offen sc1")
    a(f"buffer_store_dwordx4 v[{OP+4}:{OP+7}], v5, s[{SO}:{SO+3}], 0 offen offset:1024 sc1")
    a(f"buffer_store_dword v{OP+8}, v6, s[{SO}:{SO+3}], 0 offen sc1")
    a("s_waitcnt vmcnt(0)")

A2_LDS = 576 * 128

def role_a2(a, s_idx):
    SO, SW, SOUT = 40, 44, 48
    a(f"s_mul_i32 s4, s{s_idx}, 57")
    a("s_lshr_b32 s4, s4, 9")
    a("s_mul_i32 s5, s4, 9")
    a(f"s_sub_u32 s5, s{s_idx}, s5")
    a("v_lshrrev_b32 v1, 6, v0")
    a("v_and_b32 v2, 63, v0")
    a("s_nop 0")
    a("v_readfirstlane_b32 s6, v1")
    a("v_lshrrev_b32 v3, 3, v2")
    a("v_and_b32 v4, 7, v2")
    a("v_bfe_u32 v5, v2, 4, 1")
    a("v_lshlrev_b32 v5, 1, v5")
    a("s_and_b32 s7, s6, 1")
    a("s_lshl_b32 s7, s7, 2")
    a("v_or_b32 v5, s7, v5")
    a("v_xor_b32 v4, v4, v5")
    a("s_lshl_b32 s8, s6, 3")
    a("v_add_u32 v3, s8, v3")
    a("v_mul_u32_u24 v3, 1152, v3")
    a("v_lshl_add_u32 v3, v4, 4, v3")
    a("s_lshl_b32 s8, s5, 7")
    a("v_add_u32 v3, s8, v3")
    a("s_lshl_b32 s8, s4, 2")
    a("s_add_u32 s8, s8, s6")
    a("s_mul_i32 s8, s8, 18432")
    a("v_lshlrev_b32 v6, 4, v2")
    a("v_add_u32 v6, s8, v6")
    a("s_waitcnt lgkmcnt(0)")
    make_srd(a, SO, P_WS, S * D * 2, add=OWS)
    make_srd(a, SW, P_WO, D * D * 2)
    make_srd(a, SOUT, P_OUT, S * 2 * D * 2)
    a("s_lshl_b32 s9, s6, 10")
    for i in range(18):
        a(f"s_add_u32 m0, s9, {4096*i}")
        a(f"s_mov_b32 s10, {36864*i}")
        a(f"buffer_load_dwordx4 v3, s[{SW}:{SW+3}], s10 offen lds")
    OF = 32
    for t in range(18):
        if t % 4 == 0: a(f"s_mov_b32 s10, {4096*(t//4)}")
        a(f"buffer_load_dwordx4 v[{OF+4*t}:{OF+4*t+3}], v6, s[{SO}:{SO+3}], s10 offen offset:{1024*(t%4)} sc1")
    a("v_lshrrev_b32 v12, 4, v2")
    a("v_bfe_u32 v13, v2, 2, 2")
    a("v_and_b32 v14, 3, v2")
    a("v_mul_u32_u24 v15, 72, v12")
    a("v_add_u32 v15, v15, v13")
    a("v_lshlrev_b32 v15, 7, v15")
    a("v_and_b32 v16, 1, v14")
    a("v_lshl_add_u32 v15, v16, 3, v15")
    a("v_lshrrev_b32 v16, 1, v14")
    a("v_lshrrev_b32 v17, 1, v13")
    a("v_lshl_or_b32 v16, v17, 1, v16")
    a("v_and_b32 v17, 1, v12")
    a("v_lshl_or_b32 v16, v17, 2, v16")
    for b2 in range(2):
        for b1 in range(2):
            a(f"v_xor_b32 v17, {2*b1+4*b2}, v16")
            a(f"v_lshl_add_u32 v{8+b1+2*b2}, v17, 4, v15")
    ACC = 16
    WF = [104, 120]
    def imm_of(t, hh):
        a9, xx = divmod(t, 9)
        if xx < 8:
            e, h, half = xx >> 2, (xx >> 1) & 1, xx & 1
            return 288 * a9 + 36 * e + 20 * h + 8 * half + 4 * hh
        return 288 * a9 + 36 * hh + 16
    def wreads(t, buf):
        out = []
        for n4 in range(4):
            for hh in range(2):
                imm = imm_of(t, hh)
                b1 = n4 & 1; b2 = (n4 >> 1) ^ ((imm >> 3) & 1)
                out.append(f"ds_read_b64_tr_b16 v[{WF[buf]+4*n4+2*hh}:{WF[buf]+4*n4+2*hh+1}], v{8+b1+2*b2} offset:{imm*128}")
        return out
    a("s_waitcnt vmcnt(18)")
    a("s_barrier")
    for r in wreads(0, 0): a(r)
    for t in range(18):
        buf = t & 1
        nxt = wreads(t + 1, buf ^ 1) if t < 17 else []
        a(f"s_waitcnt vmcnt({17-t}) lgkmcnt(0)")
        for n4 in range(4):
            d = ACC + 4 * n4
            cc = "0" if t == 0 else f"v[{d}:{d+3}]"
            a(f"v_mfma_f32_16x16x32_bf16 v[{d}:{d+3}], v[{WF[buf]+4*n4}:{WF[buf]+4*n4+3}], v[{OF+4*t}:{OF+4*t+3}], {cc}")
            for r in nxt[2*n4:2*n4+2]: a(r)
    a("v_and_b32 v3, 15, v2")
    a("s_lshl_b32 s8, s4, 6")
    a("s_lshl_b32 s9, s6, 4")
    a("s_add_u32 s8, s8, s9")
    a("v_add_u32 v3, s8, v3")
    a("v_mul_u32_u24 v3, 2304, v3")
    a("v_lshrrev_b32 v4, 4, v2")
    a("v_lshl_add_u32 v3, v4, 3, v3")
    a("s_lshl_b32 s8, s5, 7")
    a("v_add_u32 v3, s8, v3")
    a("s_nop 4")
    for n4 in range(4):
        d = ACC + 4 * n4
        a(f"v_cvt_pk_bf16_f32 v{104+2*n4}, v{d}, v{d+1}")
        a(f"v_cvt_pk_bf16_f32 v{105+2*n4}, v{d+2}, v{d+3}")
        a(f"buffer_store_dwordx2 v[{104+2*n4}:{105+2*n4}], v3, s[{SOUT}:{SOUT+3}], 0 offen offset:{32*n4}")
    a("s_waitcnt vmcnt(0)")

def build_2k():
    a = Asm()
    hdr = open("cdna_kernels/" + KN + ".s.ref").read().split("\n")
    for l in hdr:
        if l.startswith("; Override") or l.startswith("; grid=") or l.startswith("; @launch"): continue
        if not l.startswith(";"): break
        a.raw(l)
    a.raw(f"; @launch kernel=k1_kernel grid=({256+288},1,1) block=(256,1,1) lds={A1_LDS}")
    a.raw(f"; @launch kernel=k2_kernel grid=({288+288},1,1) block=(256,1,1) lds={max(A2_LDS, B1_LDS)}")
    a.raw('.amdgcn_target "amdgcn-amd-amdhsa--gfx950"')
    a.raw(".text")
    a.raw(".globl k1_kernel\n.p2align 8\n.type k1_kernel,@function\nk1_kernel:")
    load_kernargs(a)
    a("s_cmp_ge_u32 s2, 256")
    a("s_cbranch_scc1 K1_B0")
    role_a1(a, 2)
    a("s_endpgm")
    a.label("K1_B0")
    a("s_sub_u32 s3, s2, 256")
    a("s_cmp_ge_u32 s3, 288")
    a("s_cbranch_scc1 K1_END")
    role_b0(a, 3)
    a.label("K1_END")
    a("s_endpgm")
    a.raw(".globl k2_kernel\n.p2align 8\n.type k2_kernel,@function\nk2_kernel:")
    load_kernargs(a)
    a("s_cmp_ge_u32 s2, 288")
    a("s_cbranch_scc0 K2_A2")
    a("s_sub_u32 s3, s2, 288")
    a("s_cmp_ge_u32 s3, 288")
    a("s_cbranch_scc1 K2_END")
    role_b1(a, 3)
    a("s_endpgm")
    a.label("K2_A2")
    role_a2(a, 2)
    a.label("K2_END")
    a("s_endpgm")
    a.raw('.section .rodata,"a"')
    a.raw(kernel_desc("k1_kernel", 240))
    a.raw(kernel_desc("k2_kernel", 224))
    return a.text()

if __name__ == "__main__":
    out = sys.argv[1] if len(sys.argv) > 1 else "v1.s"
    open(out, "w").write(build_2k())
    print("wrote", out)
```

```python
import sys
from asmlib import *

KN = "concat_heads__sliding_local_dilated__ssm_conv_h3__prompt"
S = 2048; D = 576
OWS = 0
UWS = 0x400000
P_X, P_WQKV, P_WO, P_Q, P_K, P_V, P_SHIFT, P_SSMK, P_D, P_OUT, P_DBG, P_WS = 16, 18, 20, 22, 24, 26, 28, 30, 32, 34, 36, 38

def load_kernargs(a):
    a("s_load_dwordx16 s[16:31], s[0:1], 0")
    a("s_load_dwordx8 s[32:39], s[0:1], 64")

def make_srd(a, dst, ptr, nbytes, add=None):
    if add is None:
        a(f"s_mov_b32 s{dst}, s{ptr}")
        a(f"s_and_b32 s{dst+1}, s{ptr+1}, 0xffff")
    else:
        a(f"s_add_u32 s{dst}, s{ptr}, {add}")
        a(f"s_addc_u32 s{dst+1}, s{ptr+1}, 0")
        a(f"s_and_b32 s{dst+1}, s{dst+1}, 0xffff")
    a(f"s_mov_b32 s{dst+2}, {nbytes}")
    a(f"s_mov_b32 s{dst+3}, 0x00020000")

import os
STAMPS = bool(int(os.environ.get('STAMPS','0')))
STAMP_WG = int(os.environ.get('STAMP_WG','100'))
class Stamper:
    def __init__(self, a, base=70): self.a = a; self.n = 0; self.base = base; self.names = []
    def __call__(self, name):
        if not STAMPS: return
        assert self.n < 16
        r = self.base + 2 * self.n
        self.a(f"s_memtime s[{r}:{r+1}]")
        self.names.append(name); self.n += 1
    def dump(self, sel_sgpr, sel_val, slot):
        if not STAMPS: return
        a = self.a
        l = a.uid("Lnodump")
        a("s_waitcnt lgkmcnt(0)")
        a(f"s_cmp_lg_u32 s{sel_sgpr}, {sel_val}")
        a(f"s_cbranch_scc1 {l}")
        a("v_cmp_eq_u32 vcc, 0, v0")
        a("s_and_saveexec_b64 s[60:61], vcc")
        a(f"s_cbranch_execz {l}")
        make_srd(a, 56, P_DBG, 256)
        for i in range(self.n):
            a(f"s_sub_u32 s62, s{self.base+2*i}, s{self.base}")
            a("v_mov_b32 v1, s62")
            a(f"v_mov_b32 v2, {4*(slot+i)}")
            a("buffer_store_dword v1, v2, s[56:59], 0 offen")
        a("s_waitcnt vmcnt(0)")
        a.label(l)
        print("stamps:", slot, self.names)

def role_b0(a, s_idx):
    SK, SV, SS, SU = 40, 44, 48, 52
    a(f"s_and_b32 s4, s{s_idx}, 31")
    a(f"s_lshr_b32 s5, s{s_idx}, 5")
    a("s_mul_i32 s6, s4, 73728")
    a("s_lshl_b32 s7, s5, 7")
    a("s_add_u32 s6, s6, s7")
    a("v_lshrrev_b32 v1, 5, v0")
    a("v_and_b32 v2, 31, v0")
    a("v_mul_u32_u24 v3, 9216, v1")
    a("v_add_u32 v3, s6, v3")
    a("v_lshl_add_u32 v3, v2, 2, v3")
    a("v_subrev_u32 v4, 3456, v3")
    a("v_subrev_u32 v5, 2304, v3")
    a("v_subrev_u32 v6, 1152, v3")
    a("v_add_u32 v7, 4608, v3")
    a("s_lshl_b32 s7, s5, 9")
    a("v_lshlrev_b32 v8, 4, v2")
    a("v_add_u32 v8, s7, v8")
    a("s_lshl_b32 s8, s5, 18")
    a("s_lshl_b32 s9, s4, 7")
    a("s_sub_u32 s8, s8, s9")
    a("s_add_u32 s8, s8, 4080")
    a("v_lshlrev_b32 v9, 13, v2")
    a("v_lshlrev_b32 v10, 4, v1")
    a("v_sub_u32 v9, v9, v10")
    a("v_add_u32 v9, s8, v9")
    a("s_waitcnt lgkmcnt(0)")
    make_srd(a, SK, P_K, S * D * 2)
    make_srd(a, SV, P_V, S * D * 2)
    make_srd(a, SS, P_SHIFT, D * 4 * 2)
    make_srd(a, SU, P_WS, D * 4096, add=UWS)
    KR = 12
    VR = 24
    SKR = 32
    a(f"buffer_load_dwordx4 v[{SKR}:{SKR+3}], v8, s[{SS}:{SS+3}], 0 offen")
    a(f"buffer_load_dword v{KR+0}, v4, s[{SK}:{SK+3}], 0 offen")
    a(f"buffer_load_dword v{KR+1}, v5, s[{SK}:{SK+3}], 0 offen")
    a(f"buffer_load_dword v{KR+2}, v6, s[{SK}:{SK+3}], 0 offen")
    for i in range(8):
        base = "v3" if i < 4 else "v7"
        a(f"buffer_load_dword v{KR+3+i}, {base}, s[{SK}:{SK+3}], 0 offen offset:{(i%4)*1152}")
    for i in range(8):
        base = "v3" if i < 4 else "v7"
        a(f"buffer_load_dword v{VR+i}, {base}, s[{SV}:{SV+3}], 0 offen offset:{(i%4)*1152}")
    a("s_waitcnt vmcnt(0)")
    KF = 36
    SF = 48
    ACC = 52
    VF = 60
    PK = 64
    for e in range(2):
        for i in range(11):
            if e == 0: a(f"v_lshlrev_b32 v{KF+i}, 16, v{KR+i}")
            else:      a(f"v_and_b32 v{KF+i}, 0xffff0000, v{KR+i}")
        a(f"v_lshlrev_b32 v{SF+0}, 16, v{SKR+2*e}")
        a(f"v_and_b32 v{SF+1}, 0xffff0000, v{SKR+2*e}")
        a(f"v_lshlrev_b32 v{SF+2}, 16, v{SKR+2*e+1}")
        a(f"v_and_b32 v{SF+3}, 0xffff0000, v{SKR+2*e+1}")
        for t in range(8):
            a(f"v_mul_f32 v{ACC+t}, v{KF+t}, v{SF+3}")
        for t in range(8):
            a(f"v_fmac_f32 v{ACC+t}, v{KF+t+1}, v{SF+2}")
        for t in range(8):
            a(f"v_fmac_f32 v{ACC+t}, v{KF+t+2}, v{SF+1}")
        for t in range(8):
            a(f"v_fmac_f32 v{ACC+t}, v{KF+t+3}, v{SF+0}")
        for t in range(8):
            if e == 0: a(f"v_lshlrev_b32 v{VF}, 16, v{VR+t}")
            else:      a(f"v_and_b32 v{VF}, 0xffff0000, v{VR+t}")
            a(f"v_mul_f32 v{ACC+t}, v{ACC+t}, v{VF}")
        for d in range(4):
            a(f"v_cvt_pk_bf16_f32 v{PK+4*e+d}, v{ACC+7-2*d}, v{ACC+6-2*d}")
    a("v_add_u32 v10, 4096, v9")
    a(f"buffer_store_dwordx4 v[{PK}:{PK+3}], v9, s[{SU}:{SU+3}], 0 offen sc1")
    a(f"buffer_store_dwordx4 v[{PK+4}:{PK+7}], v10, s[{SU}:{SU+3}], 0 offen sc1")
    a("s_waitcnt vmcnt(0)")

B1_CS = 4160
B1_UE = 16640
B1_UO = 2304
B1_CHS = 16640 + 4608
B1_LDS = 2 * B1_CHS

def role_b1(a, s_idx):
    SH, SU, SQ, SO = 40, 44, 48, 52
    st = Stamper(a)
    st("start")
    a("v_lshrrev_b32 v1, 6, v0")
    a("v_and_b32 v2, 63, v0")
    a("s_nop 0")
    a("v_readfirstlane_b32 s4, v1")
    a("s_nop 3")
    a("s_lshr_b32 s5, s4, 1")
    a("s_and_b32 s6, s4, 1")
    a(f"s_and_b32 s7, s{s_idx}, 7")
    a("s_mul_i32 s7, s7, 72")
    a(f"s_lshr_b32 s8, s{s_idx}, 3")
    a("s_lshl_b32 s8, s8, 1")
    a("s_add_u32 s7, s7, s8")
    a("s_add_u32 s8, s7, s5")
    a("s_lshl_b32 s9, s8, 12")
    a(f"s_mul_i32 s10, s5, {B1_CHS}")
    a("s_waitcnt lgkmcnt(0)")
    make_srd(a, SH, P_SSMK, 4096, add="s9")
    a(f"s_add_u32 s11, s9, {UWS}")
    make_srd(a, SU, P_WS, 4096, add="s11")
    make_srd(a, SQ, P_Q, S * D * 2)
    make_srd(a, SO, P_OUT, S * 2 * D * 2)
    a("v_and_b32 v3, 127, v0")
    a("v_lshlrev_b32 v4, 4, v3")
    a("v_subrev_u32 v5, 32, v4")
    a("v_subrev_u32 v6, 16, v4")
    HD = 16
    for i in range(3):
        base = HD + 8 * i
        if i == 0:
            a(f"buffer_load_dwordx4 v[{base}:{base+3}], v5, s[{SH}:{SH+3}], 0 offen")
            a(f"buffer_load_dwordx2 v[{base+4}:{base+5}], v6, s[{SH}:{SH+3}], 0 offen")
        else:
            a(f"buffer_load_dwordx4 v[{base}:{base+3}], v4, s[{SH}:{SH+3}], 0 offen offset:{2048*i-32}" if 2048*i-32 < 4096 else
              f"buffer_load_dwordx4 v[{base}:{base+3}], v7, s[{SH}:{SH+3}], 0 offen")
            a(f"buffer_load_dwordx2 v[{base+4}:{base+5}], v4, s[{SH}:{SH+3}], 0 offen offset:{2048*i-16}")
    UD = 40
    a("v_lshlrev_b32 v7, 5, v3")
    a(f"buffer_load_dwordx4 v[{UD}:{UD+3}], v7, s[{SU}:{SU+3}], 0 offen sc1")
    a(f"buffer_load_dwordx4 v[{UD+4}:{UD+7}], v7, s[{SU}:{SU+3}], 0 offen offset:16 sc1")
    QD = 48
    a("v_mul_u32_u24 v8, 1152, v0")
    a("s_lshl_b32 s12, s7, 1")
    a("v_add_u32 v8, s12, v8")
    for i in range(8):
        a(f"s_mov_b32 s13, {256*1152*i}")
        a(f"buffer_load_dword v{QD+i}, v8, s[{SQ}:{SQ+3}], s13 offen")
    a("s_load_dword s14, s[32:33], s12")
    a("v_add_u32 v9, s10, v4")
    T0 = 56
    st("issued")
    a("s_waitcnt vmcnt(10)")
    st("h_arrived")
    for i in range(3):
        d = HD + 8 * i
        if i == 2:
            a("v_cmp_gt_u32 vcc, 2, v3")
            a("s_and_saveexec_b64 s[60:61], vcc")
        a(f"v_alignbit_b32 v{T0+0}, v{d+1}, v{d+0}, 16")
        a(f"v_alignbit_b32 v{T0+1}, v{d+2}, v{d+1}, 16")
        a(f"v_alignbit_b32 v{T0+2}, v{d+3}, v{d+2}, 16")
        a(f"v_alignbit_b32 v{T0+3}, v{d+4}, v{d+3}, 16")
        a(f"v_mov_b32 v{T0+4}, v{d+1}")
        a(f"v_mov_b32 v{T0+5}, v{d+2}")
        a(f"v_mov_b32 v{T0+6}, v{d+3}")
        a(f"v_mov_b32 v{T0+7}, v{d+4}")
        a(f"v_mov_b32 v{T0+8}, v{T0+1}")
        a(f"v_mov_b32 v{T0+9}, v{T0+2}")
        a(f"v_mov_b32 v{T0+10}, v{T0+3}")
        a(f"v_alignbit_b32 v{T0+11}, v{d+5}, v{d+4}, 16")
        a(f"ds_write_b128 v9, v[{T0}:{T0+3}] offset:{0*B1_CS+2048*i}")
        a(f"ds_write_b128 v9, v[{T0+4}:{T0+7}] offset:{1*B1_CS+2048*i}")
        a(f"ds_write_b128 v9, v[{T0+8}:{T0+11}] offset:{2*B1_CS+2048*i}")
        a(f"ds_write_b128 v9, v[{d+2}:{d+5}] offset:{3*B1_CS+2048*i}")
        if i == 2:
            a("s_mov_b64 exec, s[60:61]")
        else:
            a("s_nop 1")
    a("v_mov_b32 v56, 0")
    a("v_mov_b32 v57, 0")
    a("v_mov_b32 v58, 0")
    a("v_mov_b32 v59, 0")
    a("v_cmp_gt_u32 vcc, 15, v3")
    a("s_and_saveexec_b64 s[60:61], vcc")
    a(f"ds_write_b128 v9, v[56:59] offset:{B1_UE+2048}")
    a(f"ds_write_b128 v9, v[56:59] offset:{B1_UE+B1_UO+2048}")
    a("s_mov_b64 exec, s[60:61]")
    st("table_written")
    a("s_waitcnt vmcnt(8)")
    st("u_arrived")
    a(f"ds_write_b128 v9, v[{UD}:{UD+3}] offset:{B1_UE}")
    a(f"ds_write_b128 v9, v[{UD+4}:{UD+7}] offset:{B1_UE+B1_UO}")
    a("v_and_b32 v10, 3, v2")
    a(f"v_mul_u32_u24 v10, {B1_CS}, v10")
    a("v_lshrrev_b32 v11, 2, v2")
    a("v_lshl_add_u32 v10, v11, 3, v10")
    a("s_lshl_b32 s15, s6, 8")
    a("s_add_u32 s15, s15, s10")
    a("v_add_u32 v10, s15, v10")
    a("v_and_b32 v11, 15, v2")
    a("v_lshrrev_b32 v12, 4, v2")
    a("v_sub_u32 v12, v12, v11")
    a("v_add_u32 v12, 15, v12")
    a("v_lshlrev_b32 v12, 4, v12")
    a("s_lshl_b32 s15, s6, 7")
    a("s_add_u32 s15, s15, s10")
    a(f"s_add_u32 s15, s15, {B1_UE}")
    a("v_add_u32 v11, s15, v12")
    a("s_waitcnt lgkmcnt(0)")
    a("s_barrier")
    st("barrier1")
    ACC = 64
    HB = [96, 160]
    def reads(stp, buf):
        Rp, s_ = stp >> 1, stp & 1
        hb = HB[buf]; gb = hb + 32
        out = []
        for p in range(8):
            off = p * 512 + Rp * 128 + s_ * 16
            out.append(f"ds_read_b64 v[{hb+4*p}:{hb+4*p+1}], v10 offset:{off}")
            out.append(f"ds_read_b64 v[{hb+4*p+2}:{hb+4*p+3}], v10 offset:{off+8}")
        for m in range(8):
            off = 256 * (7 - m) + 64 * Rp + B1_UO * s_
            out.append(f"ds_read_b128 v[{gb+4*m}:{gb+4*m+3}], v11 offset:{off}")
        return out
    for r in reads(0, 0): a(r)
    for j in range(8):
        for i in range(4): a(f"v_mov_b32 v{ACC+4*j+i}, 0")
    a("s_waitcnt lgkmcnt(0)")
    for stp in range(4):
        buf = stp & 1
        hb = HB[buf]; gb = hb + 32
        nxt = reads(stp + 1, buf ^ 1) if stp < 3 else []
        mf = []
        for p in range(8):
            for j in range(p, 8):
                m = j - p
                mf.append(f"v_mfma_f32_16x16x32_bf16 v[{ACC+4*j}:{ACC+4*j+3}], v[{gb+4*m}:{gb+4*m+3}], v[{hb+4*p}:{hb+4*p+3}], v[{ACC+4*j}:{ACC+4*j+3}]")
        for i, m in enumerate(mf):
            a(m)
            if i < len(nxt): a(nxt[i])
        a("s_waitcnt lgkmcnt(0)")
    st("conv_done")
    a("s_barrier")
    a("v_and_b32 v12, 15, v2")
    a("v_lshrrev_b32 v13, 4, v2")
    a("v_lshlrev_b32 v13, 8, v13")
    a("v_lshl_add_u32 v12, v12, 2, v13")
    a("s_lshl_b32 s15, s6, 13")
    a("s_add_u32 s15, s15, s10")
    a("v_add_u32 v12, s15, v12")
    a("s_nop 4")
    for j in range(8):
        for r in range(4):
            a(f"ds_write_b32 v12, v{ACC+4*j+r} offset:{1024*j+64*r}")
    a("s_waitcnt lgkmcnt(0)")
    a("s_barrier")
    st("partials")
    a("v_lshlrev_b32 v12, 2, v0")
    a("v_sub_u32 v13, 2047, v0")
    a("v_lshrrev_b32 v14, 3, v13")
    a("v_and_b32 v15, 1, v14")
    a(f"v_mul_u32_u24 v15, {B1_UO}, v15")
    a("v_lshrrev_b32 v14, 1, v14")
    a("v_lshl_add_u32 v15, v14, 4, v15")
    a("v_and_b32 v13, 7, v13")
    a("v_lshl_add_u32 v15, v13, 1, v15")
    a(f"v_add_u32 v15, {B1_UE - 256*7}, v15")
    a("s_waitcnt lgkmcnt(0)")
    a("s_lshl_b32 s56, s14, 16")
    a("s_and_b32 s57, s14, 0xffff0000")
    a("v_mul_u32_u24 v14, 2304, v0")
    a("s_add_u32 s12, s12, 1152")
    a("v_add_u32 v14, s12, v14")
    a("s_waitcnt vmcnt(0)")
    st("q_arrived")
    Y = 96
    for i in range(8):
        b = Y + 8 * i
        a(f"ds_read_b32 v{b+0}, v12 offset:{1024*i}")
        a(f"ds_read_b32 v{b+1}, v12 offset:{1024*i+8192}")
        a(f"ds_read_b32 v{b+2}, v12 offset:{1024*i+B1_CHS}")
        a(f"ds_read_b32 v{b+3}, v12 offset:{1024*i+B1_CHS+8192}")
        a(f"ds_read_u16 v{b+4}, v15 offset:{256*(7-i)}")
        a(f"ds_read_u16 v{b+5}, v15 offset:{256*(7-i)+B1_CHS}")
        if i % 2 == 1: a("s_waitcnt lgkmcnt(0)")
    for i in range(8):
        b = Y + 8 * i
        a(f"v_add_f32 v{b+0}, v{b+0}, v{b+1}")
        a(f"v_add_f32 v{b+2}, v{b+2}, v{b+3}")
        a(f"v_lshlrev_b32 v{b+4}, 16, v{b+4}")
        a(f"v_lshlrev_b32 v{b+5}, 16, v{b+5}")
        a(f"v_fmac_f32 v{b+0}, s56, v{b+4}")
        a(f"v_fmac_f32 v{b+2}, s57, v{b+5}")
        a(f"v_lshlrev_b32 v{b+6}, 16, v{QD+i}")
        a(f"v_and_b32 v{b+7}, 0xffff0000, v{QD+i}")
        a(f"v_mul_f32 v{b+0}, v{b+0}, v{b+6}")
        a(f"v_mul_f32 v{b+2}, v{b+2}, v{b+7}")
        a(f"v_cvt_pk_bf16_f32 v{b+1}, v{b+0}, v{b+2}")
        a(f"s_mov_b32 s13, {256*2304*i}")
        a(f"buffer_store_dword v{b+1}, v14, s[{SO}:{SO+3}], s13 offen")
    st("stores_issued")
    a("s_waitcnt vmcnt(0)")
    st("end")
    st.dump(3, STAMP_WG, 0)

def kernel_desc(name, vgpr, sgpr=102):
    acc = (vgpr + 3) // 4 * 4
    return f""".p2align 6
.amdhsa_kernel {name}
  .amdhsa_next_free_vgpr {vgpr}
  .amdhsa_next_free_sgpr {sgpr}
  .amdhsa_accum_offset {acc}
  .amdhsa_group_segment_fixed_size 0
  .amdhsa_kernarg_size 96
  .amdhsa_user_sgpr_count 2
  .amdhsa_user_sgpr_kernarg_segment_ptr 1
  .amdhsa_system_sgpr_workgroup_id_x 1
  .amdhsa_float_denorm_mode_32 3
.end_amdhsa_kernel
"""
```

```python
from asmlib import *
from gen import *
import os

A1_XS = 18432
A1_STAGE = 18432 + 16384
A1_NST = int(os.environ.get("A1_NST", "2"))
A1_LDS = A1_STAGE * A1_NST
QROW = 288

class VM:
    def __init__(self): self.ops = []
    def issue(self, tag): self.ops.append(tag)
    def wait_n(self, tag):
        idx = max(i for i, t in enumerate(self.ops) if t == tag)
        return len(self.ops) - 1 - idx

def role_a1(a, s_idx):
    SX, SW, SO = 40, 44, 48
    st = Stamper(a)
    st("start")
    a(f"s_and_b32 s8, s{s_idx}, 7")
    a(f"s_lshr_b32 s9, s{s_idx}, 3")
    a("s_lshr_b32 s4, s8, 1")
    a("s_lshl_b32 s4, s4, 2")
    a("s_lshr_b32 s10, s9, 3")
    a("s_add_u32 s4, s4, s10")
    a("s_and_b32 s5, s8, 1")
    a("s_lshl_b32 s5, s5, 3")
    a("s_and_b32 s10, s9, 7")
    a("s_add_u32 s5, s5, s10")
    a("s_mul_i32 s10, s9, 57")
    a("s_lshr_b32 s10, s10, 9")
    a("s_mul_i32 s10, s10, 9")
    a("s_sub_u32 s7, s9, s10")
    a("v_lshrrev_b32 v1, 6, v0")
    a("v_and_b32 v2, 63, v0")
    a("v_and_b32 v3, 15, v0")
    a("v_readfirstlane_b32 s6, v1")
    a("v_bfe_u32 v4, v0, 4, 2")
    VX = 5
    a("v_lshrrev_b32 v10, 3, v2")
    a("v_and_b32 v11, 7, v2")
    a("s_lshl_b32 s8, s4, 7")
    a("s_sub_i32 s8, s8, 16")
    for i in range(5):
        a(f"s_add_u32 s9, s6, {4*i}")
        if i == 4:
            a("s_cmp_ge_u32 s9, 18")
            a("s_cselect_b32 s9, s6, s9")
        a(f"s_lshl_b32 s{63+i}, s9, 10")
        a("s_lshl_b32 s9, s9, 3")
        a("v_add_u32 v12, s9, v10")
        a("v_bfe_u32 v13, v12, 1, 3")
        a("v_xor_b32 v13, v13, v11")
        a("v_add_u32 v12, s8, v12")
        a("v_max_i32 v12, 0, v12")
        a("v_mul_u32_u24 v12, 1152, v12")
        a(f"v_lshl_add_u32 v{VX+i}, v13, 4, v12")
    VXR = 19
    a("v_bfe_u32 v12, v3, 1, 3")
    a("v_xor_b32 v12, v12, v4")
    a("v_lshlrev_b32 v13, 7, v3")
    a("v_lshl_add_u32 v21, v12, 4, v13")
    a("v_xor_b32 v22, 64, v21")
    a("s_lshl_b32 s9, s6, 12")
    a("s_add_u32 s9, s9, 2048")
    a("v_add_u32 v19, s9, v21")
    a("v_add_u32 v20, s9, v22")
    VD = 10
    a("s_mul_i32 s10, s5, 72")
    a("s_lshl_b32 s11, s6, 6")
    for i in range(4):
        a(f"v_add_u32 v30, s11, v2")
        if i: a(f"v_add_u32 v30, {256*i}, v30")
        a("v_mul_u32_u24 v31, 4370, v30")
        a("v_lshrrev_b32 v31, 16, v31")
        a("v_mul_u32_u24 v32, 15, v31")
        a("v_sub_u32 v32, v30, v32")
        a("v_mul_u32_u24 v33, 52, v32")
        a("v_lshrrev_b32 v33, 8, v33")
        a("v_mul_u32_u24 v34, 5, v33")
        a("v_sub_u32 v34, v32, v34")
        a("v_and_b32 v35, 0xfffffff8, v31")
        a("v_and_b32 v36, 1, v31")
        a("v_lshl_or_b32 v35, v36, 2, v35")
        a("v_bfe_u32 v36, v31, 1, 2")
        a("v_or_b32 v35, v35, v36")
        a("v_mul_u32_u24 v35, 3456, v35")
        a("v_lshl_add_u32 v35, v34, 4, v35")
        a("v_add_u32 v36, 1, v33")
        a("v_mul_u32_u24 v36, 1152, v36")
        a("v_cmp_eq_u32 vcc, 2, v33")
        a("s_nop 1")
        a("v_cndmask_b32_e64 v36, v36, 0, vcc")
        a("v_add_u32 v35, v35, v36")
        a(f"v_add_u32 v{VD+i}, s10, v35")
    VT = 23
    a("v_bfe_u32 v30, v0, 2, 2")
    a("v_and_b32 v31, 3, v0")
    a("v_lshlrev_b32 v32, 3, v4")
    a("v_lshl_add_u32 v32, v30, 1, v32")
    a("v_mul_u32_u24 v32, 240, v32")
    a(f"v_add_u32 v32, {A1_XS}, v32")
    a("s_mov_b32 s56, s6")
    a("s_mov_b32 s57, 4")
    for j in range(1, 4):
        a(f"s_add_u32 s{57+j}, s6, {j}")
        a(f"s_and_b32 s{57+j}, s{57+j}, 3")
    a("s_mov_b32 s61, 5")
    a("s_mov_b32 s62, 6")
    for i in range(7):
        a(f"s_lshl_b32 s8, s{56+i}, 2")
        a("v_add_u32 v33, s8, v31")
        a("v_min_u32 v33, 26, v33")
        a("v_mul_u32_u24 v34, 57, v33")
        a("v_lshrrev_b32 v34, 9, v34")
        a("v_add_u32 v34, v34, v33")
        a(f"v_lshl_add_u32 v{VT+i}, v34, 3, v32")
    a("s_waitcnt lgkmcnt(0)")
    make_srd(a, SX, P_X, S * D * 2)
    make_srd(a, SW, P_WQKV, D * 3 * D * 2)
    make_srd(a, SO, P_WS, S * D * 2, add=OWS)
    a("s_mul_i32 s12, s7, 221184")
    a("s_lshl_b32 s13, s7, 7")
    a("s_lshl_b32 s14, s6, 10")
    ACC = 32
    WF = [96, 136]
    vm = VM()
    def dma(c):
        stg = c % A1_NST
        for i in range(5):
            a(f"s_add_u32 m0, s{63+i}, {stg*A1_STAGE}")
            a("s_nop 0")
            a(f"buffer_load_dwordx4 v{VX+i}, s[{SX}:{SX+3}], s13 offen lds")
            vm.issue(("D", c))
        for i in range(4):
            a(f"s_add_u32 m0, s14, {stg*A1_STAGE + A1_XS + i*4096}")
            a("s_nop 0")
            a(f"buffer_load_dwordx4 v{VD+i}, s[{SW}:{SW+3}], s12 offen lds")
            vm.issue(("D", c))
        a("s_add_u32 s12, s12, 221184")
        a(f"s_cmp_eq_u32 s12, {9*221184}")
        a("s_cselect_b32 s12, 0, s12")
        a("s_add_u32 s13, s13, 128")
        a(f"s_cmp_eq_u32 s13, {9*128}")
        a("s_cselect_b32 s13, 0, s13")
    def wreads(c, ks, buf):
        stg = c % A1_NST
        out = []
        xb = WF[buf] + 28
        out.append(f"ds_read_b128 v[{xb}:{xb+3}], v{19+ks} offset:{stg*A1_STAGE}")
        out.append(f"ds_read_b128 v[{xb+4}:{xb+7}], v{19+ks} offset:{stg*A1_STAGE+2048}")
        out.append(f"ds_read_b128 v[{xb+8}:{xb+11}], v{21+ks} offset:{stg*A1_STAGE}")
        for i in range(7):
            for hh in range(2):
                out.append(f"ds_read_b64_tr_b16 v[{WF[buf]+4*i+2*hh}:{WF[buf]+4*i+2*hh+1}], v{VT+i} offset:{stg*A1_STAGE+(32*ks+hh)*240}")
        return out
    def mfmas(c, ks, buf, first):
        xb = WF[buf] + 28
        out = []
        for i in range(7):
            w = f"v[{WF[buf]+4*i}:{WF[buf]+4*i+3}]"
            for tile in range(2):
                d = ACC + 28 * tile + 4 * i
                cc = "0" if first else f"v[{d}:{d+3}]"
                out.append(f"v_mfma_f32_16x16x32_bf16 v[{d}:{d+3}], {w}, v[{xb+4*tile}:{xb+4*tile+3}], {cc}")
            if i < 2:
                d = ACC + 56 + 4 * i
                cc = "0" if first else f"v[{d}:{d+3}]"
                out.append(f"v_mfma_f32_16x16x32_bf16 v[{d}:{d+3}], {w}, v[{xb+8}:{xb+11}], {cc}")
        return out
    st("addr_done")
    NST = A1_NST
    for c in range(NST):
        dma(c)
    st("issued")
    a(f"s_waitcnt vmcnt({vm.wait_n(('D',0))})")
    st("D0")
    a("s_barrier")
    for r in wreads(0, 0, 0): a(r)
    step = 0
    for c in range(9):
        for ks in range(2):
            buf = step & 1
            if ks == 0: nxt = wreads(c, 1, buf ^ 1)
            else:
                nxt = wreads(c + 1, 0, buf ^ 1) if c < 8 else []
            if ks == 1 and c < 8:
                a(f"s_waitcnt vmcnt({vm.wait_n(('D',c+1))}) lgkmcnt(0)")
                a("s_barrier")
                if c + NST < 9:
                    dma(c + NST)
            else:
                a("s_waitcnt lgkmcnt(0)")
            mf = mfmas(c, ks, buf, step == 0)
            for i, m in enumerate(mf):
                a(m)
                if i < len(nxt): a(nxt[i])
            for r in nxt[len(mf):]: a(r)
            step += 1
        if c in (0, 2, 5): st(f"chunk{c}")
    st("gemm_done")
    a("s_barrier")
    VL, VH = 100, 108
    a("v_mul_u32_u24 v5, 288, v3")
    a("s_lshl_b32 s8, s6, 5")
    a("s_add_u32 s8, s8, 16")
    a("s_mul_i32 s8, s8, 288")
    for i in range(7):
        a(f"s_lshl_b32 s9, s{56+i}, 2")
        a("v_add_u32 v6, s9, v4")
        a("v_mul_u32_u24 v7, 57, v6")
        a("v_lshrrev_b32 v7, 9, v7")
        a("v_min_u32 v7, 2, v7")
        a("v_mul_u32_u24 v8, 9, v7")
        a("v_sub_u32 v8, v6, v8")
        a("v_add_u32 v9, 1, v7")
        a("v_mul_u32_u24 v9, 96, v9")
        a("v_cmp_eq_u32 vcc, 2, v7")
        a("s_nop 1")
        a("v_cndmask_b32_e64 v9, v9, 0, vcc")
        a("v_lshlrev_b32 v10, 3, v8")
        a("v_cmp_lt_u32 vcc, 4, v8")
        a("v_add_u32 v11, 8, v10")
        a("s_nop 0")
        a("v_cndmask_b32 v10, v10, v11, vcc")
        a("v_cmp_eq_u32 vcc, 9, v8")
        a("v_add_u32 v11, 4, v10")
        a("s_nop 0")
        a("v_cndmask_b32 v10, v10, v11, vcc")
        a("v_add3_u32 v%d, v5, v9, v10" % (VL + i))
        a("v_cmp_eq_u32 vcc, 4, v8")
        a(f"v_add_u32 v10, 4, v{VL+i}")
        a(f"v_add_u32 v11, 48, v{VL+i}")
        a(f"v_cndmask_b32 v{VH+i}, v10, v11, vcc")
    T = 116
    def wr(d, lo, hi, off):
        a(f"v_cvt_pk_bf16_f32 v{T}, v{d}, v{d+1}")
        a(f"v_cvt_pk_bf16_f32 v{T+1}, v{d+2}, v{d+3}")
        a(f"ds_write_b32 v{lo}, v{T} offset:{off}")
        a(f"ds_write_b32 v{hi}, v{T+1} offset:{off}")
    for i in range(2):
        wr(ACC + 56 + 4 * i, VL + i, VH + i, 0)
    for i in range(7):
        a(f"v_add_u32 v{VL+i}, s8, v{VL+i}")
        a(f"v_add_u32 v{VH+i}, s8, v{VH+i}")
    for i in range(7):
        for tile in range(2):
            wr(ACC + 28 * tile + 4 * i, VL + i, VH + i, 4608 * tile)
    a("s_waitcnt lgkmcnt(0)")
    a("s_barrier")
    st("qkv_written")
    a("v_lshrrev_b32 v1, 1, v0")
    a("v_and_b32 v2, 1, v0")
    a("v_add_u32 v3, 2, v1")
    a("v_mul_u32_u24 v3, 288, v3")
    a("v_mul_u32_u24 v4, 48, v2")
    a("v_add_u32 v3, v3, v4")
    Q = 8
    KB = 20
    for part, (o, n) in enumerate(((0, 4), (16, 4), (32, 1))):
        pass
    def rd_row(dst, off):
        a(f"ds_read_b128 v[{dst}:{dst+3}], v3 offset:{off}")
        a(f"ds_read_b128 v[{dst+4}:{dst+7}], v3 offset:{off+16}")
        a(f"ds_read_b32 v{dst+8}, v3 offset:{off+32}")
    rd_row(Q, 14 * 288)
    for w in range(8):
        rd_row(KB + 10 * w, (14 - 2 * w) * 288 + 96)
        if w % 4 == 3: a("s_waitcnt lgkmcnt(0)")
    L = 100
    for w in range(8):
        a(f"v_dot2_f32_bf16 v{L+w}, v{Q}, v{KB+10*w}, 0")
        for i in range(1, 9):
            a(f"v_dot2_f32_bf16 v{L+w}, v{Q+i}, v{KB+10*w+i}, v{L+w}")
    for w in range(8):
        rd_row(KB + 10 * w, (14 - 2 * w) * 288 + 192)
    lm = a.uid("Lnomask")
    a("s_cmp_lg_u32 s4, 0")
    a(f"s_cbranch_scc1 {lm}")
    a("v_mov_b32 v110, 0xf149f2ca")
    for w in range(1, 8):
        a(f"v_cmp_gt_u32 vcc, {2*w}, v1")
        a("s_nop 1")
        a(f"v_cndmask_b32 v{L+w}, v{L+w}, v110, vcc")
    a.label(lm)
    a(f"v_max3_f32 v110, v{L}, v{L+1}, v{L+2}")
    a(f"v_max3_f32 v110, v110, v{L+3}, v{L+4}")
    a(f"v_max3_f32 v110, v110, v{L+5}, v{L+6}")
    a(f"v_max_f32 v110, v110, v{L+7}")
    cs = 18 ** -0.5 * 1.4426950408889634
    import struct
    csh = struct.unpack("<I", struct.pack("<f", cs))[0]
    a(f"s_mov_b32 s8, {csh:#x}")
    a("v_mul_f32 v111, s8, v110")
    for w in range(8):
        a(f"v_fma_f32 v{L+w}, v{L+w}, s8, -v111")
    for w in range(8):
        a(f"v_exp_f32 v{L+w}, v{L+w}")
    a("s_nop 0")
    a(f"v_add_f32 v110, v{L}, v{L+1}")
    for w in range(2, 8):
        a(f"v_add_f32 v110, v110, v{L+w}")
    a("v_rcp_f32 v110, v110")
    a("s_nop 0")
    for w in range(8):
        a(f"v_mul_f32 v{L+w}, v{L+w}, v110")
    PP = 112
    for j in range(4):
        a(f"v_cvt_pk_bf16_f32 v{PP+j}, v{L+2*j}, v{L+2*j+1}")
    a("s_mov_b32 s8, 0x05040100")
    a("s_mov_b32 s9, 0x07060302")
    O = 116
    TP = 134
    a("s_waitcnt lgkmcnt(0)")
    for j in range(4):
        A_ = KB + 10 * (2 * j); B_ = KB + 10 * (2 * j + 1)
        for i in range(9):
            a(f"v_perm_b32 v{TP}, v{B_+i}, v{A_+i}, s8")
            a(f"v_perm_b32 v{TP+1}, v{B_+i}, v{A_+i}, s9")
            c0 = "0" if j == 0 else f"v{O+2*i}"
            c1 = "0" if j == 0 else f"v{O+2*i+1}"
            a(f"v_dot2_f32_bf16 v{O+2*i}, v{TP}, v{PP+j}, {c0}")
            a(f"v_dot2_f32_bf16 v{O+2*i+1}, v{TP+1}, v{PP+j}, {c1}")
    OP = 136
    for i in range(9):
        a(f"v_cvt_pk_bf16_f32 v{OP+i}, v{O+2*i}, v{O+2*i+1}")
    st("attn_done")
    a("s_lshr_b32 s8, s5, 1")
    a("s_and_b32 s9, s5, 1")
    a("s_lshr_b32 s10, s8, 2")
    a("s_mul_i32 s10, s10, 9")
    a("s_and_b32 s11, s8, 3")
    a("s_lshl_b32 s11, s11, 8")
    a("s_mul_i32 s12, s4, 147456")
    a("s_add_u32 s12, s12, s11")
    a("s_lshl_b32 s13, s10, 10")
    a("s_add_u32 s12, s12, s13")
    a("v_lshrrev_b32 v4, 4, v1")
    a("v_mul_u32_u24 v4, 18432, v4")
    a("v_and_b32 v5, 15, v1")
    a("v_lshl_add_u32 v4, v5, 4, v4")
    a("v_add_u32 v4, s12, v4")
    a("s_lshl_b32 s13, s9, 12")
    a("v_lshlrev_b32 v5, 11, v2")
    a("v_add3_u32 v5, v4, v5, s13")
    a("s_lshl_b32 s13, s9, 3")
    a("s_add_u32 s13, s13, 8192")
    a("v_lshlrev_b32 v6, 2, v2")
    a("v_add3_u32 v6, v4, v6, s13")
    a(f"buffer_store_dwordx4 v[{OP}:{OP+3}], v5, s[{SO}:{SO+3}], 0 offen sc1")
    a(f"buffer_store_dwordx4 v[{OP+4}:{OP+7}], v5, s[{SO}:{SO+3}], 0 offen offset:1024 sc1")
    a(f"buffer_store_dword v{OP+8}, v6, s[{SO}:{SO+3}], 0 offen sc1")
    a("s_waitcnt vmcnt(0)")
    st("end")
    st.dump(s_idx, STAMP_WG, 0)

A2_LDS = 576 * 128

def role_a2(a, s_idx):
    SO, SW, SOUT = 40, 44, 48
    st = Stamper(a)
    st("start")
    a(f"s_mul_i32 s4, s{s_idx}, 57")
    a("s_lshr_b32 s4, s4, 9")
    a("s_mul_i32 s5, s4, 9")
    a(f"s_sub_u32 s5, s{s_idx}, s5")
    a("v_lshrrev_b32 v1, 6, v0")
    a("v_and_b32 v2, 63, v0")
    a("s_nop 0")
    a("v_readfirstlane_b32 s6, v1")
    a("v_lshrrev_b32 v3, 3, v2")
    a("v_and_b32 v4, 7, v2")
    a("v_bfe_u32 v5, v2, 4, 1")
    a("v_lshlrev_b32 v5, 1, v5")
    a("s_and_b32 s7, s6, 1")
    a("s_lshl_b32 s7, s7, 2")
    a("v_or_b32 v5, s7, v5")
    a("v_xor_b32 v4, v4, v5")
    a("s_lshl_b32 s8, s6, 3")
    a("v_add_u32 v3, s8, v3")
    a("v_mul_u32_u24 v3, 1152, v3")
    a("v_lshl_add_u32 v3, v4, 4, v3")
    a("s_lshl_b32 s8, s5, 7")
    a("v_add_u32 v3, s8, v3")
    a("s_lshl_b32 s8, s4, 2")
    a("s_add_u32 s8, s8, s6")
    a("s_mul_i32 s8, s8, 18432")
    a("v_lshlrev_b32 v6, 4, v2")
    a("v_add_u32 v6, s8, v6")
    a("s_waitcnt lgkmcnt(0)")
    make_srd(a, SO, P_WS, S * D * 2, add=OWS)
    make_srd(a, SW, P_WO, D * D * 2)
    make_srd(a, SOUT, P_OUT, S * 2 * D * 2)
    a("s_lshl_b32 s9, s6, 10")
    for i in range(18):
        a(f"s_add_u32 m0, s9, {4096*i}")
        a(f"s_mov_b32 s10, {36864*i}")
        a(f"buffer_load_dwordx4 v3, s[{SW}:{SW+3}], s10 offen lds")
    OF = 32
    for t in range(18):
        if t % 4 == 0: a(f"s_mov_b32 s10, {4096*(t//4)}")
        a(f"buffer_load_dwordx4 v[{OF+4*t}:{OF+4*t+3}], v6, s[{SO}:{SO+3}], s10 offen offset:{1024*(t%4)} sc1")
    a("v_lshrrev_b32 v12, 4, v2")
    a("v_bfe_u32 v13, v2, 2, 2")
    a("v_and_b32 v14, 3, v2")
    a("v_mul_u32_u24 v15, 72, v12")
    a("v_add_u32 v15, v15, v13")
    a("v_lshlrev_b32 v15, 7, v15")
    a("v_and_b32 v16, 1, v14")
    a("v_lshl_add_u32 v15, v16, 3, v15")
    a("v_lshrrev_b32 v16, 1, v14")
    a("v_lshrrev_b32 v17, 1, v13")
    a("v_lshl_or_b32 v16, v17, 1, v16")
    a("v_and_b32 v17, 1, v12")
    a("v_lshl_or_b32 v16, v17, 2, v16")
    for b2 in range(2):
        for b1 in range(2):
            a(f"v_xor_b32 v17, {2*b1+4*b2}, v16")
            a(f"v_lshl_add_u32 v{8+b1+2*b2}, v17, 4, v15")
    ACC = 16
    WF = [104, 120]
    def imm_of(t, hh):
        a9, xx = divmod(t, 9)
        if xx < 8:
            e, h, half = xx >> 2, (xx >> 1) & 1, xx & 1
            return 288 * a9 + 36 * e + 20 * h + 8 * half + 4 * hh
        return 288 * a9 + 36 * hh + 16
    def wreads(t, buf):
        out = []
        for n4 in range(4):
            for hh in range(2):
                imm = imm_of(t, hh)
                b1 = n4 & 1; b2 = (n4 >> 1) ^ ((imm >> 3) & 1)
                out.append(f"ds_read_b64_tr_b16 v[{WF[buf]+4*n4+2*hh}:{WF[buf]+4*n4+2*hh+1}], v{8+b1+2*b2} offset:{imm*128}")
        return out
    st("issued")
    a("s_waitcnt vmcnt(18)")
    st("wo_arrived")
    a("s_barrier")
    for r in wreads(0, 0): a(r)
    for t in range(18):
        buf = t & 1
        nxt = wreads(t + 1, buf ^ 1) if t < 17 else []
        a(f"s_waitcnt vmcnt({17-t}) lgkmcnt(0)")
        for n4 in range(4):
            d = ACC + 4 * n4
            cc = "0" if t == 0 else f"v[{d}:{d+3}]"
            a(f"v_mfma_f32_16x16x32_bf16 v[{d}:{d+3}], v[{WF[buf]+4*n4}:{WF[buf]+4*n4+3}], v[{OF+4*t}:{OF+4*t+3}], {cc}")
            for r in nxt[2*n4:2*n4+2]: a(r)
    st("gemm_done")
    a("v_and_b32 v3, 15, v2")
    a("s_lshl_b32 s8, s4, 6")
    a("s_lshl_b32 s9, s6, 4")
    a("s_add_u32 s8, s8, s9")
    a("v_add_u32 v3, s8, v3")
    a("v_mul_u32_u24 v3, 2304, v3")
    a("v_lshrrev_b32 v4, 4, v2")
    a("v_lshl_add_u32 v3, v4, 3, v3")
    a("s_lshl_b32 s8, s5, 7")
    a("v_add_u32 v3, s8, v3")
    a("s_nop 4")
    for n4 in range(4):
        d = ACC + 4 * n4
        a(f"v_cvt_pk_bf16_f32 v{104+2*n4}, v{d}, v{d+1}")
        a(f"v_cvt_pk_bf16_f32 v{105+2*n4}, v{d+2}, v{d+3}")
        a(f"buffer_store_dwordx2 v[{104+2*n4}:{105+2*n4}], v3, s[{SOUT}:{SOUT+3}], 0 offen offset:{32*n4}")
    a("s_waitcnt vmcnt(0)")
    st("end")
    st.dump(s_idx, STAMP_WG, 16)

def build_2k(en=('a1','b0','a2','b1')):
    a = Asm()
    hdr = open("cdna_kernels/" + KN + ".s.ref").read().split("\n")
    for l in hdr:
        if l.startswith("; Override") or l.startswith("; grid=") or l.startswith("; @launch"): continue
        if not l.startswith(";"): break
        a.raw(l)
    a.raw(f"; @launch kernel=k1_kernel grid=({256+288},1,1) block=(256,1,1) lds={A1_LDS}")
    a.raw(f"; @launch kernel=k2_kernel grid=({288+288},1,1) block=(256,1,1) lds={max(A2_LDS, B1_LDS)}")
    a.raw('.amdgcn_target "amdgcn-amd-amdhsa--gfx950"')
    a.raw(".text")
    a.raw(".globl k1_kernel\n.p2align 8\n.type k1_kernel,@function\nk1_kernel:")
    load_kernargs(a)
    a("s_cmp_ge_u32 s2, 256")
    a("s_cbranch_scc1 K1_B0")
    if 'a1' in en: role_a1(a, 2)
    a("s_endpgm")
    a.label("K1_B0")
    a("s_sub_u32 s3, s2, 256")
    a("s_cmp_ge_u32 s3, 288")
    a("s_cbranch_scc1 K1_END")
    if 'b0' in en: role_b0(a, 3)
    a.label("K1_END")
    a("s_endpgm")
    a.raw(".globl k2_kernel\n.p2align 8\n.type k2_kernel,@function\nk2_kernel:")
    load_kernargs(a)
    a("s_cmp_ge_u32 s2, 288")
    a("s_cbranch_scc0 K2_A2")
    a("s_sub_u32 s3, s2, 288")
    a("s_cmp_ge_u32 s3, 288")
    a("s_cbranch_scc1 K2_END")
    if 'b1' in en: role_b1(a, 3)
    a("s_endpgm")
    a.label("K2_A2")
    if 'a2' in en: role_a2(a, 2)
    a.label("K2_END")
    a("s_endpgm")
    a.raw('.section .rodata,"a"')
    a.raw(kernel_desc("k1_kernel", 240))
    a.raw(kernel_desc("k2_kernel", 224))
    return a.text()

if __name__ == "__main__":
    out = sys.argv[1] if len(sys.argv) > 1 else "v1.s"
    en = sys.argv[2].split(",") if len(sys.argv) > 2 else ('a1','b0','a2','b1')
    open(out, "w").write(build_2k(en))
    print("wrote", out)
```
